```python
import torch

def _softmax(x, axis=-1):
    return torch.softmax(x, dim=axis)
def _gelu(x):
    return torch.nn.functional.gelu(x, approximate="tanh")
def _silu(x):
    return torch.nn.functional.silu(x)
def _sigmoid(x):
    return torch.sigmoid(x)
def _layernorm(x, axis=-1, eps=1e-5):
    m = x.mean(dim=axis, keepdim=True)
    v = x.var(dim=axis, keepdim=True, unbiased=False)
    return (x - m) / torch.sqrt(v + eps)
def _scatter_add(tgt, idx, src, axis=0):
    return tgt.clone().index_add_(axis, idx, src)
def _segment_sum(src, seg, n):
    out = torch.zeros((n,) + src.shape[1:], dtype=src.dtype)
    return out.index_add_(0, seg, src)
def _pad(x, pw):
    flat = tuple(v for pair in reversed(pw) for v in pair)
    return torch.nn.functional.pad(x, flat)

kernel_name = 'standalone__gqa_block_cached__decode'

def setup_inputs():

    _w = (lambda a: (lambda t: t.to(torch.bfloat16) if t.is_floating_point() else t)(torch.as_tensor(a)))
    B, Sq, D = 1, 1, 640
    Hq, Hkv, Sk, Dh = 32, 32, 8192, 192
    assert Hq % Hkv == 0, (Hq, Hkv)
    return {
        "x": _w((lambda *s: torch.randn(*s, dtype=torch.bfloat16) * 0.8)(B, Sq, D)),
        "k_cache": _w((lambda *s: torch.randn(*s, dtype=torch.bfloat16) * 0.8)(B, Hkv, Sk, Dh)),
        "v_cache": _w((lambda *s: torch.randn(*s, dtype=torch.bfloat16) * 0.05)(B, Hkv, Sk, Dh)),
        "wq": _w((lambda *s: torch.randn(*s, dtype=torch.bfloat16) * 0.8)(D, Hq * Dh) * (D ** -0.5)),
        "wo": _w((lambda *s: torch.randn(*s, dtype=torch.bfloat16) * 0.05)(Hq * Dh, D) * ((Hq * Dh) ** -0.5)),
    }

def reference(x, k_cache, v_cache, wq, wo):
    B, Sq, D = x.shape
    Hq, Dh = 32, 192
    Hkv = k_cache.shape[1]
    rep = Hq // Hkv
    q = (lambda x, *d: x.permute(*d))((x @ wq).reshape(B, Sq, Hq, Dh), 0, 2, 1, 3)
    k = (lambda x, n, axis: torch.repeat_interleave(x, n, dim=axis))(k_cache, rep, axis=1)
    v = (lambda x, n, axis: torch.repeat_interleave(x, n, dim=axis))(v_cache, rep, axis=1)
    scores = torch.einsum("bhqd,bhkd->bhqk", q, k) * (Dh ** -0.5)
    p = _softmax(scores, axis=-1)
    o = torch.einsum("bhqk,bhkd->bhqd", p, v)
    return (lambda x, *d: x.permute(*d))(o, 0, 2, 1, 3).reshape(B, Sq, Hq * Dh) @ wo
```

```python
import sys, struct
KNAME="standalone__gqa_block_cached__decode_kernel"
def fb(x): return "0x%08x"%struct.unpack("<I",struct.pack("<f",x))[0]

class G:
    def __init__(s): s.L=[]; s.q=[]
    def A(s,t):
        for line in t.split("\n"):
            line=line.strip()
            if line: s.L.append("    "+line if not line.endswith(":") else line)
    def issue(s,tag): s.q.append(tag); s.n=getattr(s,'n',0)+1
    def wait(s,tag):
        idx=max(i for i,t in enumerate(s.q) if t==tag)
        n=len(s.q)-1-idx
        assert n<=63,(tag,n)
        s.A(f"s_waitcnt vmcnt({n})")
        s.q=s.q[idx+1:]
    def text(s): return "\n".join(s.L)

SPIN=200000
def gen(R=36, LA=3, TH=6, XS=1, WOAT=31, MLAT=13, KIL=True, XLOC=True, MIMIC=True, FL="nt", WFL="nt", WOFL="nt",
        QSP=3, EARLY=0, GATES=((0,15,17,'h'),(0,19,21),(1,15,17),(1,22,24,'h')), TG=None, ENDAT=99, LAE=3, WODEF=29, SOFT=None, PD2=1, PSL2=4, OST='', L2LD='sc1', MKE=True, GOWN=True, GONE=False, GLS=2, PACE=None, PSL=2, PDG=2, GSL=1, GPRE=2, GNEED=8, NP2=1, P2OFF=8, STAMP=False, FINE=0, STW="all", name=KNAME):
    g=G(); A=g.A
    RS=R//3
    assert R%3==0 and RS<=12 and len(GATES)<=16
    vLANE=1; vKOFF=2; vT0=3; vT4=4; vM=5; vT1=9; vT2=10; vT3=11; vA=12; vACC=16
    vT5=28; vT6=29; vT7=30; vT8=31; vT9=32; vPW=33; vPR=34; vWOA=35
    vQ=36; vS=48; vRING=64
    vML=208; vMS=216
    vP1A=218; vP1B=219; vL16=220; vP2W=221; vL8=222; vP2A=223; vMW=224
    vG1=228; vG2=232; vL4=236; vPB=237
    vSWQ=36; vSX=156
    sX=4; sK=6; sV=8; sWQ=10; sWO=12; sOUT=14; sWS=18
    sH=20; sS=21; sW=22
    srdX=24; srdWQ=28; srdK=32; srdV=36; srdWO=40; srdWS=44; srdOUT=48
    sG=52; sQOWN=53; sSC=54; sQM=55
    sT=56; sT1=57; sT2=58; sT3=59; sTAG=60
    sSTAMP=64
    sPUB1=80; sPOLL1=81; sPM=82; sL12=84; sPUB2=86; sPOLL2=87; sXCC=88; sLOC=89; sOUTO=90; sCONS=91
    LDS_PART=0; LDS_ML=12288; LDS_QBF=12416; LDS_P2=12800; LDS_FQ=15360; LDS_PC=15376
    WS_QS=0; WS_L1=0x80000; WS_L2=0x100000; WS_G=0x140000; WS_MK=0x150000; WS_MK2=0x160000; WS_PC=0x170000; WS_ST=0x180000; WS_QS2=0x200000; WS_SIZE=0x280000
    nst=[0]
    SETS={0:("start","fill","q","kend","vend","pub1","pub2","fin"),
          2:("start","vend","pub1","p1ok","mfma","b4","pub2","fin"),
          3:("start","karg","b0","f0","fill","q","kend")}
    def stamp(nm):
        if STAMP and nm in SETS[FINE]:
            k=SETS[FINE].index(nm)
            A(f"s_memrealtime s[{sSTAMP+2*k}:{sSTAMP+2*k+1}]")
    def xlane(op,r,tmp):
        A(f"v_mov_b32 v{tmp}, v{r}\ns_nop 1\nv_permlane16_swap_b32 v{tmp}, v{r}\ns_nop 1\n{op} v{r}, v{r}, v{tmp}")
        A(f"v_mov_b32 v{tmp}, v{r}\ns_nop 1\nv_permlane32_swap_b32 v{tmp}, v{r}\ns_nop 1\n{op} v{r}, v{r}, v{tmp}")
    def red8(op,r):
        for dpp in ("quad_perm:[1,0,3,2]","quad_perm:[2,3,0,1]","row_half_mirror"):
            A(f"s_nop 1\n{op}_dpp v{r}, v{r}, v{r} {dpp} row_mask:0xf bank_mask:0xf")
    def srd(d,base,off,size):
        if off is None: A(f"s_mov_b32 s{d}, s{base}\ns_and_b32 s{d+1}, s{base+1}, 0xffff")
        else: A(f"s_add_u32 s{d}, s{base}, s{off}\ns_addc_u32 s{d+1}, s{base+1}, 0\ns_and_b32 s{d+1}, s{d+1}, 0xffff")
        if isinstance(size,int): A(f"s_mov_b32 s{d+2}, {size}")
        else: A(size.format(d=d+2))
        A(f"s_mov_b32 s{d+3}, 0x20000")
    def tags(): A(f"s_add_u32 s{sTAG}, s{sG}, 1\ns_xor_b32 s{sTAG+1}, s{sTAG}, 0x9e3779b9")
    def masks():
        A(f"""
        v_and_b32 v{vT5}, 1, v{vT2}
        v_lshlrev_b32 v{vT5}, 4, v{vT5}
        v_mov_b32 v{vT6}, 0xffff
        v_lshlrev_b32 v{vT5}, v{vT5}, v{vT6}
        v_lshrrev_b32 v{vT6}, 1, v{vT2}
        """)
        for i in range(4): A(f"v_cmp_eq_u32 s[{62 if i==0 else 92 if i==1 else 94 if i==2 else 84}:{63 if i==0 else 93 if i==1 else 95 if i==2 else 85}], {i}, v{vT6}")
        A("s_nop 0")
        for i,p in enumerate((62,92,94,84)): A(f"v_cndmask_b32 v{vM+i}, 0, v{vT5}, s[{p}:{p+1}]")
    A(f"{name}:")
    A("s_cmp_ge_u32 s2, 256\ns_cbranch_scc1 L_end")
    A("s_load_dwordx16 s[4:19], s[0:1], 0")
    if STAMP:
        for k in range(16): A(f"s_mov_b32 s{sSTAMP+k}, 0")
    stamp("start")
    A(f"v_and_b32 v{vLANE}, 63, v0\nv_lshrrev_b32 v{vT0}, 6, v0")
    if XLOC:
        A(f"""
        s_and_b32 s{sT}, s2, 7
        s_lshr_b32 s{sT1}, s2, 3
        v_readfirstlane_b32 s{sW}, v{vT0}
        s_and_b32 s{sT2}, s{sT1}, 3
        s_lshl_b32 s{sT}, s{sT}, 2
        s_add_u32 s{sH}, s{sT}, s{sT2}
        s_lshr_b32 s{sS}, s{sT1}, 2
        """)
    else:
        A(f"s_lshr_b32 s{sH}, s2, 3\ns_and_b32 s{sS}, s2, 7\nv_readfirstlane_b32 s{sW}, v{vT0}")
    A(f"""
    v_lshrrev_b32 v{vT1}, 3, v{vLANE}
    v_and_b32 v{vT2}, 7, v{vLANE}
    v_lshlrev_b32 v{vT3}, 4, v{vT2}
    v_mul_u32_u24 v{vKOFF}, 384, v{vT1}
    v_add_u32 v{vKOFF}, v{vKOFF}, v{vT3}
    s_mul_i32 s{sT}, s{sW}, 3072
    v_add_u32 v{vKOFF}, s{sT}, v{vKOFF}
    v_mul_u32_u24 v{vT0}, 122880, v{vT1}
    v_add_u32 v{vT0}, v{vT0}, v{vT3}
    v_mul_u32_u24 v{vT4}, 20, v{vT1}
    """)
    if KIL:
        STEP=8*24576
        A(f"s_mul_i32 s{sT2}, s{sH}, {8192*384}\ns_mul_i32 s{sT3}, s{sS}, 24576\ns_add_u32 s{sT2}, s{sT2}, s{sT3}")
    else:
        STEP=24576
        A(f"s_lshl_b32 s{sT2}, s{sH}, 3\ns_add_u32 s{sT2}, s{sT2}, s{sS}\ns_mul_i32 s{sT2}, s{sT2}, {1024*384}")
    A("s_waitcnt lgkmcnt(0)")
    stamp("karg")
    A(f"s_cmp_lg_u32 s{sW}, 0\ns_cbranch_scc1 L_notsvc")
    A("s_setprio 3")
    A(f"s_mul_i32 s{sT1}, s{sS}, 80\ns_lshl_b32 s{sT}, s{sT1}, 1")
    srd(srdX,sX,sT,160)
    A(f"s_mul_i32 s{sT}, s{sT1}, 12288\ns_mul_i32 s{sT1}, s{sH}, 384\ns_add_u32 s{sT}, s{sT}, s{sT1}")
    srd(srdWQ,sWQ,sT,79*12288+384)
    A(f"buffer_load_dwordx4 v[{vSX}:{vSX+3}], v{vT4}, s[{srdX}:{srdX+3}], 0 offen")
    A(f"buffer_load_dword v{vSX+4}, v{vT4}, s[{srdX}:{srdX+3}], 0 offen offset:16")
    for t in range(10):
        if t>0: A(f"s_mov_b32 s{sT}, {t*12288}")
        so = f"s{sT}" if t>0 else "0"
        for i in range(3):
            r=vSWQ+(t*3+i)*4
            A(f"buffer_load_dwordx4 v[{r}:{r+3}], v{vT0}, s[{srdWQ}:{srdWQ+3}], {so} offen offset:{i*128} {WFL}")
    A(f"""
    v_mov_b32 v{vT5}, 0
    v_lshlrev_b32 v{vT6}, 2, v{vLANE}
    ds_write_b32 v{vT6}, v{vT5} offset:{LDS_FQ}
    ds_write_b32 v{vT6}, v{vT5} offset:{LDS_ML}
    L_notsvc:
    """)
    ksz = f"s_sub_u32 s{{d}}, {8192*384}, s{sT3}" if KIL else 1024*384
    srd(srdK,sK,sT2,ksz)
    srd(srdV,sV,sT2,ksz)
    slot_of={}; free_slots=list(range(RS)); nxt=[0]
    vPA=244; vOC=246; vPt=247; vPu=248; vZ=249; vOne=250; vSlot=251
    sPT=94; sPB=95; sPOWN=92; pc={"n":0,"pend":None}
    def pace_reduce():
        A(f"""
        v_xor_b32 v{vPt}, s{sPT}, v{vOC}
        v_cmp_gt_u32 vcc, 0x200, v{vPt}
        s_nop 1
        v_cndmask_b32 v{vPt}, 0, v{vPt}, vcc
        """)
        red8("v_max_u32",vPt)
        A(f"v_mov_b32 v{vPu}, 0x1ff\ns_nop 0\nv_cndmask_b32 v{vPt}, v{vPt}, v{vPu}, s[{sPOWN}:{sPOWN+1}]\ns_nop 1")
        A(f"v_min_u32_dpp v{vPt}, v{vPt}, v{vPt} row_ror:8 row_mask:0xf bank_mask:0xf")
        xlane("v_min_u32",vPt,vPu)
        A(f"v_add_u32 v{vPt}, {PACE[1]}, v{vPt}\ns_mov_b64 exec, 1\nds_max_u32 v{vZ}, v{vPt} offset:{LDS_PC+4}\ns_mov_b64 exec, -1")
    def pace_publish_poll():
        A(f"""
        v_or_b32 v{vPt}, s{sPT}, v{vPA}
        s_mov_b64 exec, 1
        buffer_store_dword v{vPt}, v{vSlot}, s[{srdWS}:{srdWS+3}], s{sPB} offen sc1
        s_mov_b64 exec, -1
        buffer_load_dword v{vOC}, v{vL4}, s[{srdWS}:{srdWS+3}], s{sPB} offen sc1
        """)
    tgn=[0]; sTB=53
    def tg_count(j,gate):
        X0,P,NG,D=TG; LP=P.bit_length()-1; k=tgn[0]; tgn[0]+=1
        A(f"""
        s_mov_b64 exec, 1
        ds_add_rtn_u32 v{vPA}, v{vZ}, v{vOne} offset:{LDS_PC}
        ds_read_b32 v{vPA+1}, v{vZ} offset:{LDS_PC+4}
        s_mov_b64 exec, -1
        s_waitcnt lgkmcnt(0)
        v_readfirstlane_b32 s{sT1}, v{vPA}
        v_readfirstlane_b32 s{sT2}, v{vPA+1}
        s_nop 0
        s_add_u32 s{sT3}, s{sT1}, {1-X0}
        s_and_b32 s{sT}, s{sT3}, {P-1}
        s_cbranch_scc1 L_tg_nomk{k}
        s_lshr_b32 s{sT}, s{sT3}, {LP}
        s_cmp_ge_u32 s{sT}, {NG}
        s_cbranch_scc1 L_tg_nomk{k}
        s_lshl_b32 s{sT}, s{sT}, 7
        s_add_u32 s{sT}, s{sT}, s{sTB}
        s_mov_b64 exec, 1
        buffer_store_dwordx4 v[{vG1}:{vG1+3}], v{vSlot}, s[{srdWS}:{srdWS+3}], s{sT} offen sc1
        s_mov_b64 exec, -1
        L_tg_nomk{k}:
        """)
        if not gate: return
        A(f"""
        s_cmp_lt_u32 s{sT1}, {X0+D}
        s_cbranch_scc1 L_tg_ok{k}
        s_sub_u32 s{sT1}, s{sT1}, {X0+D}
        s_lshr_b32 s{sT1}, s{sT1}, {LP}
        s_add_u32 s{sT1}, s{sT1}, 1
        s_min_u32 s{sT1}, s{sT1}, {NG}
        s_cmp_le_u32 s{sT1}, s{sT2}
        s_cbranch_scc1 L_tg_ok{k}
        s_mov_b32 s{sT3}, 0
        L_tg_blk{k}:
        s_lshl_b32 s{sT}, s{sT2}, 7
        s_add_u32 s{sT}, s{sT}, s{sTB}
        s_mov_b64 exec, 0xff
        buffer_load_dwordx4 v[240:243], v{vL16}, s[{srdWS}:{srdWS+3}], s{sT} offen sc1
        s_waitcnt vmcnt(0)
        v_cmp_eq_u64 vcc, s[{sTAG}:{sTAG+1}], v[242:243]
        s_mov_b64 exec, -1
        s_or_b32 s{sT}, vcc_lo, s92
        s_cmp_eq_u32 s{sT}, 0xff
        s_cbranch_scc0 L_tg_again{k}
        s_add_u32 s{sT2}, s{sT2}, 1
        v_mov_b32 v{vPA+1}, s{sT2}
        s_mov_b64 exec, 1
        ds_max_u32 v{vZ}, v{vPA+1} offset:{LDS_PC+4}
        s_mov_b64 exec, -1
        s_cmp_le_u32 s{sT1}, s{sT2}
        s_cbranch_scc1 L_tg_ok{k}
        s_branch L_tg_blk{k}
        L_tg_again{k}:
        s_add_u32 s{sT3}, s{sT3}, 1
        s_cmp_gt_u32 s{sT3}, {SPIN}
        s_cbranch_scc1 L_tg_ok{k}
        s_sleep {GSL}
        ds_read_b32 v{vPA+1}, v{vZ} offset:{LDS_PC+4}
        s_waitcnt lgkmcnt(0)
        v_readfirstlane_b32 s{sT}, v{vPA+1}
        s_nop 0
        s_max_u32 s{sT2}, s{sT2}, s{sT}
        s_cmp_le_u32 s{sT1}, s{sT2}
        s_cbranch_scc0 L_tg_blk{k}
        L_tg_ok{k}:
        """)
    def pace_check(j):
        k=pc["n"]; pc["n"]+=1
        A(f"""
        s_waitcnt lgkmcnt(0)
        v_readfirstlane_b32 s{sT1}, v{vPA}
        v_readfirstlane_b32 s{sT2}, v{vPA+1}
        s_nop 0
        s_cmp_le_u32 s{sT1}, s{sT2}
        s_cbranch_scc1 L_pace_ok{k}
        s_mov_b32 s{sT3}, 0
        L_pace_blk{k}:
        """)
        pace_publish_poll()
        A("s_waitcnt vmcnt(0)")
        pace_reduce()
        A(f"""
        ds_read_b64 v[{vPA}:{vPA+1}], v{vZ} offset:{LDS_PC}
        s_waitcnt lgkmcnt(0)
        v_readfirstlane_b32 s{sT1}, v{vPA}
        v_readfirstlane_b32 s{sT2}, v{vPA+1}
        s_nop 0
        s_cmp_le_u32 s{sT1}, s{sT2}
        s_cbranch_scc1 L_pace_ok{k}
        s_add_u32 s{sT3}, s{sT3}, 1
        s_cmp_gt_u32 s{sT3}, {SPIN}
        s_cbranch_scc1 L_pace_ok{k}
        s_sleep {PSL}
        s_branch L_pace_blk{k}
        L_pace_ok{k}:
        """)
    def pace_after(j):
        A(f"s_mov_b64 exec, 1\nds_add_u32 v{vZ}, v{vOne} offset:{LDS_PC}\ns_mov_b64 exec, -1")
        if pc["pend"] is not None and j-pc["pj"]>=PDG:
            A(f"s_waitcnt vmcnt({g.n-pc['pend']})")
            pace_reduce(); pc["pend"]=None
        A(f"ds_read_b64 v[{vPA}:{vPA+1}], v{vZ} offset:{LDS_PC}")
        if (j>=RS-1 and (j-(RS-1))%PACE[0]==0) or j==31:
            A("s_waitcnt lgkmcnt(0)")
            if j==RS-1:
                A(f"""
                s_add_u32 s{sPT}, s{sG}, 1
                s_lshl_b32 s{sPT}, s{sPT}, 9
                s_and_b32 s{sT1}, s2, 7
                s_lshl_b32 s{sT1}, s{sT1}, 3
                s_mov_b64 s[{sPOWN}:{sPOWN+1}], 0xff
                s_lshl_b64 s[{sPOWN}:{sPOWN+1}], s[{sPOWN}:{sPOWN+1}], s{sT1}
                """)
            pace_publish_poll()
            if j<31: pc["pend"]=g.n; pc["pj"]=j
    def alloc(j,high=False):
        sl=max(free_slots) if high else min(free_slots)
        free_slots.remove(sl); slot_of[j]=sl; return sl
    def load_step(j):
        if j<32:
            if PACE and j>=RS: pace_check(j)
            if TG and j>=RS: tg_count(j, True)
            slot=alloc(j); srd_=srdK if j<16 else srdV; t=j%16
            if t>0: A(f"s_mov_b32 s{sT}, {t*STEP}")
            so = f"s{sT}" if t>0 else "0"
            for i in range(3):
                r=vRING+(slot*3+i)*4
                A(f"buffer_load_dwordx4 v[{r}:{r+3}], v{vKOFF}, s[{srd_}:{srd_+3}], {so} offen offset:{i*128} {FL}")
                g.issue(f"kv{j}")
            if PACE: pace_after(j)
            if TG and j<RS:
                if j==0:
                    A("s_waitcnt lgkmcnt(0)"); tags()
                    A(f"v_mov_b32 v{vG1+2}, s{sTAG}\nv_mov_b32 v{vG1+3}, s{sTAG+1}")
                tg_count(j, False)
        else:
            slot=alloc(j,True)
            for i in range(3):
                tp=3*(j-32)+i; r=vRING+(slot*3+i)*4
                if tp*1280<4096: A(f"buffer_load_dwordx4 v[{r}:{r+3}], v{vWOA}, s[{srdWO}:{srdWO+3}], 0 offen offset:{tp*1280} {WOFL}")
                else: A(f"s_mov_b32 s{sT}, {tp*1280}\nbuffer_load_dwordx4 v[{r}:{r+3}], v{vWOA}, s[{srdWO}:{srdWO+3}], s{sT} offen {WOFL}")
                g.issue("wo")
    WOATN = WOAT if isinstance(WOAT,int) else 99
    def tgt(t):
        target=max(min(RS+t,RS+LA-1), t+(LAE if t>=ENDAT else LA))
        if t==15: target+=XS
        return min(target,31)
    def before_consume(t):
        while nxt[0]<=tgt(t) and len(free_slots)>(2 if t<WOATN else 0):
            load_step(nxt[0]); nxt[0]+=1
    def after_consume(t):
        free_slots.append(slot_of[t])
        while nxt[0]<=tgt(t) and len(free_slots)>(2 if (t<WOATN and nxt[0]>=RS+LA) else 0):
            load_step(nxt[0]); nxt[0]+=1
        if WODEF is not None and t==WODEF:
            A(f"s_cmp_lg_u32 s{sW}, 7\ns_cbranch_scc1 L_wof\nv_mov_b32 v{vT5}, 0\nv_mov_b32 v{vT6}, 1\ns_mov_b64 exec, 1\nds_write_b32 v{vT5}, v{vT6} offset:{LDS_FQ+32}\ns_mov_b64 exec, -1\nL_wof:")
        if t==WOAT:
            if WODEF is not None:
                A(f"""
                s_cmp_ge_u32 s{sW}, 4
                s_cbranch_scc1 L_wo_go
                v_mov_b32 v{vT5}, 0
                s_mov_b32 s{sT2}, 0
                L_wo_wait:
                ds_read_b32 v{vT6}, v{vT5} offset:{LDS_FQ+32}
                s_waitcnt lgkmcnt(0)
                v_cmp_ne_u32 vcc, 0, v{vT6}
                s_cbranch_vccnz L_wo_go
                s_add_u32 s{sT2}, s{sT2}, 1
                s_cmp_gt_u32 s{sT2}, {SPIN*4}
                s_cbranch_scc1 L_wo_go
                s_sleep 2
                s_branch L_wo_wait
                L_wo_go:
                """)
            load_step(32); load_step(33)
    mkn={}; sOWNO=50+42; sOWNH=94; sZERO=95
    def gate_hooks(t,part="both"):
        def parse(gt):
            gi,ms,gs=gt[:3]; kind=gt[3] if len(gt)>3 else "o"
            cls=gt[4] if len(gt)>4 else None; ncls=gt[5] if len(gt)>5 else 1
            return gi,ms,gs,kind,cls,ncls
        def clscheck(kind,cls,ncls,lab):
            if cls is None: return
            if kind=="o": A(f"s_lshr_b32 s{sT1}, s2, 3\ns_and_b32 s{sT1}, s{sT1}, {ncls-1}")
            else: A(f"s_and_b32 s{sT1}, s{sH}, {ncls-1}")
            A(f"s_cmp_lg_u32 s{sT1}, {cls}\ns_cbranch_scc1 {lab}")
        for k,gt in enumerate(GATES):
            gi,ms,gs,kind,cls,ncls=parse(gt)
            if isinstance(gi,tuple): gi=gi[1]
            if t==ms and part in ("both","mark"):
                A(f"s_cmp_lg_u32 s{sW}, {3+4*gi}\ns_cbranch_scc1 L_nomark{k}")
                clscheck(kind,cls,ncls,f"L_nomark{k}")
                if kind=="o":
                    A(f"s_lshr_b32 s{sT}, s2, 3\ns_lshl_b32 s{sT}, s{sT}, 11\ns_and_b32 s{sT1}, s2, 7")
                else:
                    A(f"s_lshl_b32 s{sT}, s{sH}, 11\ns_add_u32 s{sT}, s{sT}, {WS_MK2-WS_MK}\ns_mov_b32 s{sT1}, s{sS}")
                A(f"""
                s_lshl_b32 s{sT1}, s{sT1}, 4
                s_add_u32 s{sT}, s{sT}, s{sT1}
                s_add_u32 s{sT}, s{sT}, {WS_MK+128*k}
                v_mov_b32 v{vT5}, 0
                s_mov_b64 exec, 1
                """)
                if kind=="o":
                    A(f"buffer_store_dwordx4 v[{vG1}:{vG1+3}], v{vT5}, s[{srdWS}:{srdWS+3}], s{sT} offen sc1")
                else:
                    A(f"""
                    s_bitcmp1_b32 s{sLOC}, 1
                    s_cbranch_scc1 L_mkl{k}
                    buffer_store_dwordx4 v[{vG1}:{vG1+3}], v{vT5}, s[{srdWS}:{srdWS+3}], s{sT} offen sc1
                    s_branch L_mkd{k}
                    L_mkl{k}:
                    buffer_store_dwordx4 v[{vG1}:{vG1+3}], v{vT5}, s[{srdWS}:{srdWS+3}], s{sT} offen
                    L_mkd{k}:
                    """)
                A(f"s_mov_b64 exec, -1\nL_nomark{k}:")
        if part=="mark": return
        for k,gt in enumerate(GATES):
            gi,ms,gs,kind,cls,ncls=parse(gt)
            if isinstance(gi,tuple): gi=gi[0]
            vMK,sMK=(240,91) if kind=="o" else (252,93)
            nsoft=(SOFT or {}).get(k,0)
            if nsoft and gs-nsoft<=t<gs:
                A(f"s_lshr_b32 s{sT}, s{sW}, 2\ns_cmp_lg_u32 s{sT}, {gi}\ns_cbranch_scc1 L_soft{k}_{t}\ns_bitcmp1_b32 s55, {k}\ns_cbranch_scc1 L_soft{k}_{t}")
                if kind=="o": A(f"s_lshr_b32 s{sMK}, s2, 3\ns_lshl_b32 s{sMK}, s{sMK}, 11\ns_add_u32 s{sMK}, s{sMK}, {WS_MK+128*k}")
                else: A(f"s_lshl_b32 s{sMK}, s{sH}, 11\ns_add_u32 s{sMK}, s{sMK}, {WS_MK2+128*k}")
                A(f"""
                s_mov_b64 exec, 0xff
                buffer_load_dwordx4 v[{vMK}:{vMK+3}], v{vL16}, s[{srdWS}:{srdWS+3}], s{sMK} offen sc1
                s_waitcnt vmcnt(0)
                v_cmp_eq_u64 vcc, s[{sTAG}:{sTAG+1}], v[{vMK+2}:{vMK+3}]
                s_mov_b64 exec, -1
                s_or_b32 s{sT}, vcc_lo, s{(sOWNO if kind=="o" else sOWNH)}
                s_cmp_eq_u32 s{sT}, 0xff
                s_cbranch_scc0 L_soft{k}_{t}
                s_bitset1_b32 s55, {k}
                L_soft{k}_{t}:
                """)
            if nsoft:
                if t==gs:
                    A(f"s_lshr_b32 s{sT}, s{sW}, 2\ns_cmp_lg_u32 s{sT}, {gi}\ns_cbranch_scc1 L_gate{k}_ok\ns_bitcmp1_b32 s55, {k}\ns_cbranch_scc1 L_gate{k}_ok")
                    A(f"""
                    s_mov_b32 s{sT2}, 0
                    s_mov_b64 exec, 0xff
                    L_gate{k}_s:
                    buffer_load_dwordx4 v[{vMK}:{vMK+3}], v{vL16}, s[{srdWS}:{srdWS+3}], s{sMK} offen sc1
                    s_waitcnt vmcnt(0)
                    v_cmp_eq_u64 vcc, s[{sTAG}:{sTAG+1}], v[{vMK+2}:{vMK+3}]
                    s_or_b32 s{sT}, vcc_lo, s{(sOWNO if kind=="o" else sOWNH)}
                    s_cmp_eq_u32 s{sT}, 0xff
                    s_cbranch_scc1 L_gate{k}_sd
                    s_add_u32 s{sT2}, s{sT2}, 1
                    s_cmp_gt_u32 s{sT2}, {SPIN}
                    s_cbranch_scc1 L_gate{k}_sd
                    s_sleep {GSL}
                    s_branch L_gate{k}_s
                    L_gate{k}_sd:
                    s_mov_b64 exec, -1
                    L_gate{k}_ok:
                    """)
                continue
            if t==gs-GPRE:
                if GONE: A(f"s_cmp_lg_u32 s{sW}, {3+4*gi}\ns_cbranch_scc1 L_gpre{k}")
                else: A(f"s_lshr_b32 s{sT}, s{sW}, 2\ns_cmp_lg_u32 s{sT}, {gi}\ns_cbranch_scc1 L_gpre{k}")
                clscheck(kind,cls,ncls,f"L_gpre{k}")
                if kind=="o": A(f"s_lshr_b32 s{sMK}, s2, 3\ns_lshl_b32 s{sMK}, s{sMK}, 11\ns_add_u32 s{sMK}, s{sMK}, {WS_MK+128*k}")
                else: A(f"s_lshl_b32 s{sMK}, s{sH}, 11\ns_add_u32 s{sMK}, s{sMK}, {WS_MK2+128*k}")
                A(f"""
                s_mov_b64 exec, 0xff
                buffer_load_dwordx4 v[{vMK}:{vMK+3}], v{vL16}, s[{srdWS}:{srdWS+3}], s{sMK} offen sc1
                s_mov_b64 exec, -1
                L_gpre{k}:
                """)
                mkn[k]=g.n
            if t==gs:
                A(f"s_lshr_b32 s{sT}, s{sW}, 2\ns_cmp_lg_u32 s{sT}, {gi}\ns_cbranch_scc1 L_gate{k}_ok")
                clscheck(kind,cls,ncls,f"L_gate{k}_ok")
                if GONE:
                    A(f"""
                    s_mov_b32 s{sT2}, 0
                    v_mov_b32 v{vT5}, 0
                    s_cmp_eq_u32 s{sW}, {3+4*gi}
                    s_cbranch_scc1 L_gate{k}_p
                    L_gate{k}_l:
                    ds_read_b32 v{vT6}, v{vT5} offset:{LDS_FQ+64+4*k}
                    s_waitcnt lgkmcnt(0)
                    v_cmp_ne_u32 vcc, 0, v{vT6}
                    s_cbranch_vccnz L_gate{k}_ok
                    s_add_u32 s{sT2}, s{sT2}, 1
                    s_cmp_gt_u32 s{sT2}, {SPIN*4}
                    s_cbranch_scc1 L_gate{k}_ok
                    s_sleep {GLS}
                    s_branch L_gate{k}_l
                    L_gate{k}_p:
                    """)
                else: A(f"s_mov_b32 s{sT2}, 0")
                A(f"""
                s_mov_b64 exec, 0xff
                s_waitcnt vmcnt({g.n-mkn[k]})
                L_gate{k}:
                v_cmp_eq_u64 vcc, s[{sTAG}:{sTAG+1}], v[{vMK+2}:{vMK+3}]
                s_or_b32 s{sT}, vcc_lo, s{(sOWNO if kind=="o" else sOWNH) if GOWN else sZERO}
                s_cmp_eq_u32 s{sT}, 0xff
                s_cbranch_scc1 L_gate{k}_done
                s_add_u32 s{sT2}, s{sT2}, 1
                s_cmp_gt_u32 s{sT2}, {SPIN}
                s_cbranch_scc1 L_gate{k}_done
                s_sleep {GSL}
                buffer_load_dwordx4 v[{vMK}:{vMK+3}], v{vL16}, s[{srdWS}:{srdWS+3}], s{sMK} offen sc1
                s_waitcnt vmcnt(0)
                s_branch L_gate{k}
                L_gate{k}_done:
                """)
                if GONE: A(f"v_mov_b32 v{vT6}, 1\ns_mov_b64 exec, 1\nds_write_b32 v{vT5}, v{vT6} offset:{LDS_FQ+64+4*k}")
                A(f"s_mov_b64 exec, -1\nL_gate{k}_ok:")
    masks()
    srd(srdWS,sWS,None,WS_SIZE)
    A(f"s_add_u32 s92, s{sWS}, {WS_G}\ns_addc_u32 s93, s{sWS+1}, 0")
    for r in range(12): A(f"v_mov_b32 v{vACC+r}, 0")
    A(f"""
    v_lshrrev_b32 v{vT5}, 5, v{vLANE}
    v_mul_u32_u24 v{vT5}, 768, v{vT5}
    v_lshl_add_u32 v{vT5}, v{vT2}, 5, v{vT5}
    v_bfe_u32 v{vT6}, v{vLANE}, 4, 1
    v_lshl_add_u32 v{vT5}, v{vT6}, 4, v{vT5}
    s_mul_i32 s{sT}, s{sW}, 1536
    v_add_u32 v{vPW}, s{sT}, v{vT5}
    s_mov_b32 s{sPM}, 0x00ff00ff
    s_mov_b32 s{sPM+1}, 0xff00ff00
    """)
    def write_part():
        A(f"s_mov_b64 exec, s[{sPM}:{sPM+1}]")
        for i in range(3): A(f"ds_write_b128 v{vPW}, v[{vACC+4*i}:{vACC+4*i+3}] offset:{LDS_PART+i*256}")
        A("s_mov_b64 exec, -1")
    A("s_waitcnt lgkmcnt(0)\ns_barrier")
    A(f"s_load_dword s{sG}, s[92:93], 0")
    stamp("b0")
    A(f"s_cmp_lg_u32 s{sW}, 0\ns_cbranch_scc1 L_fill")
    A(f"""
    s_lshl_b32 s{sT}, s{sH}, 3
    s_add_u32 s{sT}, s{sT}, s{sS}
    s_lshl_b32 s{sT}, s{sT}, 11
    s_add_u32 s{sQOWN}, s{sT}, {WS_QS}
    s_mov_b32 s{sT2}, 0x01000100
    s_mov_b32 s{sT3}, 0x03020302
    """)
    for t in range(10):
        xr=vSX+t//2; sel=sT2 if t%2==0 else sT3
        if t==0: A("s_waitcnt vmcnt(27)")
        A(f"v_perm_b32 v{vT5}, v{xr}, v{xr}, s{sel}")
        for i in range(4): A(f"v_and_b32 v{vA+i}, v{vT5}, v{vM+i}")
        A(f"s_waitcnt vmcnt({27-3*t})\ns_nop 0")
        for i in range(3):
            r=vSWQ+(t*3+i)*4
            A(f"v_mfma_f32_16x16x32_bf16 v[{vACC+4*i}:{vACC+4*i+3}], v[{vA}:{vA+3}], v[{r}:{r+3}], v[{vACC+4*i}:{vACC+4*i+3}]")
    r0=vRING
    A(f"""
    v_lshlrev_b32 v{vT5}, 4, v{vLANE}
    v_lshlrev_b32 v{vT4}, 3, v{vLANE}
    s_lshl_b32 s{sT}, s{sH}, 14
    s_add_u32 s{sT2}, s{sT}, {WS_QS}
    s_mov_b32 s62, -1
    s_mov_b32 s63, 0x1ffff
    s_getreg_b32 s{sXCC}, hwreg(HW_REG_XCC_ID, 0, 4)
    v_cmp_eq_u32 vcc, 48, v{vLANE}
    """)
    write_part()
    A("s_waitcnt lgkmcnt(0)")
    tags()
    A(f"""
    s_mov_b64 exec, s[62:63]
    ds_read_b128 v[{r0}:{r0+3}], v{vT5} offset:{LDS_PART}
    ds_read_b128 v[{r0+4}:{r0+7}], v{vT5} offset:{LDS_PART+768}
    v_mov_b32 v{vA+2}, s{sTAG}
    v_mov_b32 v{vA+3}, s{sTAG+1}
    v_mov_b32 v{vACC+2}, s{sTAG}
    v_mov_b32 v{vACC+3}, s{sTAG+1}
    v_mov_b32 v{vT6}, s{sXCC}
    s_waitcnt lgkmcnt(0)
    v_add_f32 v{vA}, v{r0}, v{r0+4}
    v_add_f32 v{vA+1}, v{r0+1}, v{r0+5}
    v_add_f32 v{vACC}, v{r0+2}, v{r0+6}
    v_add_f32 v{vACC+1}, v{r0+3}, v{r0+7}
    v_cndmask_b32 v{vA}, v{vA}, v{vT6}, vcc
    buffer_store_dwordx4 v[{vA}:{vA+3}], v{vT5}, s[{srdWS}:{srdWS+3}], s{sQOWN} offen
    buffer_store_dwordx4 v[{vACC}:{vACC+3}], v{vT5}, s[{srdWS}:{srdWS+3}], s{sQOWN} offen offset:1024
    s_add_u32 s{sT3}, s{sQOWN}, {WS_QS2}
    buffer_store_dwordx4 v[{vA}:{vA+3}], v{vT5}, s[{srdWS}:{srdWS+3}], s{sT3} offen sc1
    buffer_store_dwordx4 v[{vACC}:{vACC+3}], v{vT5}, s[{srdWS}:{srdWS+3}], s{sT3} offen offset:1024 sc1
    s_mov_b32 s{sT1}, 0
    s_mov_b32 s{sQM}, 0
    L_pollq:
    s_and_b32 s{sT}, s{sT1}, {QSP}
    s_cmp_eq_u32 s{sT}, {QSP}
    s_cselect_b32 s{sT3}, {WS_QS2}, 0
    s_add_u32 s{sT3}, s{sT3}, s{sT2}
    """)
    for sp in range(8):
        A(f"s_bitcmp1_b32 s{sQM}, {sp}\ns_cbranch_scc1 L_pq_skip{sp}\ns_add_u32 s{sT}, s{sT3}, {sp*2048}")
        A(f"buffer_load_dwordx4 v[{r0+8*sp}:{r0+8*sp+3}], v{vT5}, s[{srdWS}:{srdWS+3}], s{sT} offen sc1")
        A(f"buffer_load_dwordx4 v[{r0+8*sp+4}:{r0+8*sp+7}], v{vT5}, s[{srdWS}:{srdWS+3}], s{sT} offen offset:1024 sc1")
        A(f"L_pq_skip{sp}:")
    A("s_waitcnt vmcnt(0)")
    for sp in range(8):
        A(f"v_cmp_eq_u64 vcc, s[{sTAG}:{sTAG+1}], v[{r0+8*sp+2}:{r0+8*sp+3}]")
        A(f"v_cmp_eq_u64 s[94:95], s[{sTAG}:{sTAG+1}], v[{r0+8*sp+6}:{r0+8*sp+7}]\ns_and_b64 vcc, vcc, s[94:95]")
        A(f"s_cmp_eq_u64 vcc, s[62:63]\ns_cselect_b32 s{sT}, {1<<sp}, 0\ns_or_b32 s{sQM}, s{sQM}, s{sT}")
    A(f"""
    s_cmp_eq_u32 s{sQM}, 0xff
    s_cbranch_scc1 L_pollq_ok
    s_add_u32 s{sT1}, s{sT1}, 1
    s_cmp_gt_u32 s{sT1}, {SPIN}
    s_cbranch_scc0 L_pollq
    L_pollq_ok:
    v_xor_b32 v{vT6}, s{sXCC}, v{r0}
    """)
    for sp in range(1,8): A(f"v_xor_b32 v{vT7}, s{sXCC}, v{r0+8*sp}\nv_or_b32 v{vT6}, v{vT6}, v{vT7}")
    A(f"s_nop 0\nv_readlane_b32 s{sLOC}, v{vT6}, 48\ns_mov_b32 s62, -1\ns_mov_b32 s63, 0xffff\ns_mov_b64 exec, s[62:63]")
    A(f"s_cmp_eq_u32 s{sLOC}, 0\ns_cselect_b32 s{sLOC}, 3, 1")
    for o in (0,1,4,5):
        for k in range(4): A(f"v_add_f32 v{r0+8*k+o}, v{r0+8*k+o}, v{r0+8*(k+4)+o}")
    for o in (0,1,4,5): A(f"v_add_f32 v{r0+o}, v{r0+o}, v{r0+8+o}\nv_add_f32 v{r0+16+o}, v{r0+16+o}, v{r0+24+o}")
    for o in (0,1,4,5): A(f"v_add_f32 v{r0+o}, v{r0+o}, v{r0+16+o}")
    A(f"""
    v_cvt_pk_bf16_f32 v{vA}, v{r0}, v{r0+1}
    v_cvt_pk_bf16_f32 v{vA+1}, v{r0+4}, v{r0+5}
    ds_write_b64 v{vT4}, v[{vA}:{vA+1}] offset:{LDS_QBF}
    v_mov_b32 v{vT7}, s{sLOC}
    v_mov_b32 v{vT6}, 0
    s_waitcnt lgkmcnt(0)
    s_mov_b64 exec, 1
    ds_write_b32 v{vT6}, v{vT7} offset:{LDS_FQ}
    s_mov_b64 exec, -1
    """)
    for r in range(12): A(f"v_mov_b32 v{vACC+r}, 0")
    A("s_setprio 0\nL_fill:")
    if TG:
        A(f"""
        s_lshr_b32 s53, s2, 3
        s_lshl_b32 s53, s53, 11
        s_add_u32 s53, s53, {WS_MK+1024}
        s_and_b32 s{sT}, s2, 7
        s_lshl_b32 s{sT1}, s{sT}, 4
        v_mov_b32 v{vSlot}, s{sT1}
        v_mov_b32 v{vZ}, 0
        v_mov_b32 v{vOne}, 1
        """)
    if PACE:
        A(f"""
        s_lshr_b32 s{sPB}, s2, 3
        s_lshl_b32 s{sPB}, s{sPB}, 8
        s_add_u32 s{sPB}, s{sPB}, {WS_PC}
        s_and_b32 s{sT}, s2, 7
        s_lshl_b32 s{sT1}, s{sT}, 3
        s_add_u32 s{sT1}, s{sT1}, s{sW}
        s_lshl_b32 s{sT1}, s{sT1}, 2
        v_mov_b32 v{vSlot}, s{sT1}
        v_mov_b32 v{vZ}, 0
        v_mov_b32 v{vOne}, 1
        v_lshlrev_b32 v{vL4}, 2, v{vLANE}
        """)
    for j in range(RS):
        load_step(j)
        if j==1 and STAMP and FINE==3: A("s_waitcnt vmcnt(3)"); stamp("f0")
        if j<RS-1 and TH is not None: A(f"s_waitcnt vmcnt({TH})")
    nxt[0]=RS
    A(f"s_mul_i32 s{sT}, s{sH}, {192*1280}\ns_mul_i32 s{sT1}, s{sS}, 160\ns_add_u32 s{sT}, s{sT}, s{sT1}")
    srd(srdWO,sWO,sT,f"s_sub_u32 s{{d}}, {192*1280}, s{sT1}")
    srd(srdOUT,sOUT,None,1280)
    A(f"""
    v_lshrrev_b32 v{vT5}, 4, v{vLANE}
    v_and_b32 v{vT7}, 15, v{vLANE}                ; n / e = l&15
    v_mul_u32_u24 v{vT6}, {6*1280}, v{vT5}
    v_lshl_add_u32 v{vT6}, v{vT7}, 4, v{vT6}
    s_mul_i32 s{sT}, s{sW}, {24*1280}
    v_add_u32 v{vT6}, s{sT}, v{vT6}
    v_mov_b32 v{vT8}, 0x7fffffff
    v_cmp_gt_u32 vcc, 10, v{vT7}
    v_min_u32 v{vT9}, 11, v{vT7}
    v_mul_u32_u24 v{vPR}, 3072, v{vT5}
    v_cndmask_b32 v{vWOA}, v{vT8}, v{vT6}, vcc
    v_lshl_add_u32 v{vPR}, v{vT9}, 3, v{vPR}
    s_mul_i32 s{sT}, s{sW}, 96
    v_add_u32 v{vPR}, s{sT}, v{vPR}
    v_lshlrev_b32 v{vP2W}, 5, v{vT7}
    v_lshl_add_u32 v{vP2W}, v{vT5}, 4, v{vP2W}
    s_mul_i32 s{sT}, s{sW}, 320
    v_add_u32 v{vP2W}, s{sT}, v{vP2W}
    v_bfe_u32 v{vT6}, v{vLANE}, 1, 3
    v_lshlrev_b32 v{vT6}, 11, v{vT6}
    s_lshl_b32 s{sT}, s{sW}, 8
    v_add_u32 v{vT6}, s{sT}, v{vT6}
    v_and_b32 v{vT7}, 1, v{vLANE}
    v_lshl_add_u32 v{vT9}, v{vT5}, 1, v{vT7}
    v_add_u32 v{vT5}, 8, v{vT5}
    v_cmp_eq_u32 vcc, 1, v{vT7}
    v_mov_b32 v{vT7}, 12
    v_lshl_add_u32 v{vP1A}, v{vT9}, 4, v{vT6}
    v_cndmask_b32 v{vT5}, v{vT5}, v{vT7}, vcc
    v_lshl_add_u32 v{vP1B}, v{vT5}, 4, v{vT6}
    v_and_b32 v{vT7}, 15, v{vLANE}
    v_mul_u32_u24 v{vT5}, 11, v{vT7}
    v_lshrrev_b32 v{vT5}, 5, v{vT5}               ; kg = e/3   (e < 12)
    v_mul_u32_u24 v{vT6}, 3, v{vT5}
    v_sub_u32 v{vT6}, v{vT7}, v{vT6}              ; r = e - 3kg
    v_lshrrev_b32 v{vT9}, 1, v{vT6}               ; r==2 -> 1
    v_lshl_add_u32 v{vT9}, v{vT5}, 1, v{vT9}      ; 2kg + (r>>1)
    v_add_u32 v{vT5}, 8, v{vT5}                   ; 8 + kg
    v_cmp_eq_u32 vcc, 1, v{vT6}
    v_cmp_eq_u32 s[62:63], 12, v{vT7}
    v_mov_b32 v{vT6}, 12
    v_cndmask_b32 v{vT9}, v{vT9}, v{vT5}, vcc
    v_cndmask_b32 v{vT9}, v{vT9}, v{vT6}, s[62:63]
    v_lshlrev_b32 v{vPB}, 4, v{vT9}               ; level-1 publish address
    v_lshlrev_b32 v{vL16}, 4, v{vLANE}
    v_lshlrev_b32 v{vL8}, 3, v{vLANE}
    v_lshlrev_b32 v{vL4}, 2, v{vLANE}
    v_lshrrev_b32 v{vT6}, 2, v{vLANE}
    v_lshlrev_b32 v{vT6}, 11, v{vT6}
    v_and_b32 v{vT7}, 3, v{vLANE}
    v_lshl_add_u32 v{vT6}, v{vT7}, 4, v{vT6}
    v_cmp_gt_u32 vcc, 40, v{vLANE}
    v_and_b32 v{vT7}, 8, v{vLANE}
    v_cmp_eq_u32 s[62:63], 0, v{vT7}
    v_cndmask_b32 v{vP2A}, v{vT8}, v{vT6}, vcc    ; level-2 publish address (l<40)
    s_lshl_b32 s{sT}, s{sH}, 3
    s_add_u32 s{sT}, s{sT}, s{sS}
    """)
    for i in range(4): A(f"v_cndmask_b32 v{vMW+i}, 0, v{vM+i}, s[62:63]")
    A(f"""
    s_lshl_b32 s{sT}, s{sT}, 3
    s_add_u32 s{sT}, s{sT}, s{sW}
    s_lshl_b32 s{sT}, s{sT}, 8
    s_add_u32 s{sPUB1}, s{sT}, {WS_L1}
    s_lshl_b32 s{sT}, s{sH}, 14
    s_add_u32 s{sPOLL1}, s{sT}, {WS_L1}
    s_mul_i32 s{sT}, s{sS}, 20480
    s_add_u32 s{sT}, s{sT}, {WS_L2}
    s_lshl_b32 s{sT1}, s{sH}, 6
    s_add_u32 s{sPUB2}, s{sT}, s{sT1}
    s_lshl_b32 s{sT1}, s{sH}, 11
    s_add_u32 s{sPOLL2}, s{sT}, s{sT1}
    s_mul_i32 s{sT}, s{sS}, 160
    s_lshl_b32 s{sT1}, s{sH}, 4
    s_add_u32 s{sOUTO}, s{sT}, s{sT1}
    s_mov_b64 s[{sL12}:{sL12+1}], 0x1000
    s_and_b32 s{sT}, s2, 7
    s_lshl_b32 s92, 1, s{sT}
    s_lshl_b32 s94, 1, s{sS}
    s_mov_b32 s95, 0
    s_mov_b32 s55, 0
    s_waitcnt lgkmcnt(0)
    """)
    tags()
    A(f"v_mov_b32 v{vG1+2}, s{sTAG}\nv_mov_b32 v{vG1+3}, s{sTAG+1}\nv_mov_b32 v{vG2+2}, s{sTAG}\nv_mov_b32 v{vG2+3}, s{sTAG+1}")
    stamp("fill")
    A(f"""
    v_mov_b32 v{vT5}, 0
    s_mov_b32 s{sT2}, 0
    L_waitq:
    ds_read_b32 v{vT7}, v{vT5} offset:{LDS_FQ}
    s_waitcnt lgkmcnt(0)
    v_cmp_ne_u32 vcc, 0, v{vT7}
    s_cbranch_vccnz L_waitq_ok
    s_add_u32 s{sT2}, s{sT2}, 1
    s_cmp_gt_u32 s{sT2}, {SPIN*4}
    s_cbranch_scc1 L_waitq_ok
    s_sleep 1
    s_branch L_waitq
    L_waitq_ok:
    v_readfirstlane_b32 s{sLOC}, v{vT7}
    v_lshlrev_b32 v{vT5}, 4, v{vT2}
    """)
    for i in range(3): A(f"ds_read_b128 v[{vQ+4*i}:{vQ+4*i+3}], v{vT5} offset:{LDS_QBF+i*128}")
    A("s_waitcnt lgkmcnt(0)")
    stamp("q")
    for t in range(16):
        slot=slot_of[t]
        A(f"v_mov_b32 v{vS+t}, 0")
        if f"kv{t}" in g.q: g.wait(f"kv{t}")
        if MKE: gate_hooks(t,"mark")
        before_consume(t)
        for i in range(3):
            for u in range(4): A(f"v_dot2c_f32_bf16 v{vS+t}, v{vRING+(slot*3+i)*4+u}, v{vQ+4*i+u}")
        after_consume(t)
        gate_hooks(t,"gate" if MKE else "both")
    stamp("kend")
    A("s_nop 1")
    for dpp in ("quad_perm:[1,0,3,2]","quad_perm:[2,3,0,1]","row_half_mirror"):
        for t in range(16): A(f"v_add_f32_dpp v{vS+t}, v{vS+t}, v{vS+t} {dpp} row_mask:0xf bank_mask:0xf")
    LOG2E=1.4426950408889634; SCALE=192**-0.5
    if MIMIC:
        A(f"s_mov_b32 s{sT}, {fb(SCALE)}\ns_mov_b32 s{sT1}, 0xffff0000")
        for t in range(0,16,2):
            A(f"v_cvt_pk_bf16_f32 v{vT5}, v{vS+t}, v{vS+t+1}")
            A(f"v_lshlrev_b32 v{vS+t}, 16, v{vT5}\nv_and_b32 v{vS+t+1}, s{sT1}, v{vT5}")
            A(f"v_mul_f32 v{vS+t}, s{sT}, v{vS+t}\nv_mul_f32 v{vS+t+1}, s{sT}, v{vS+t+1}")
            A(f"v_cvt_pk_bf16_f32 v{vT5}, v{vS+t}, v{vS+t+1}")
            A(f"v_lshlrev_b32 v{vS+t}, 16, v{vT5}\nv_and_b32 v{vS+t+1}, s{sT1}, v{vT5}")
        c=LOG2E
    else: c=LOG2E*SCALE
    A(f"v_max3_f32 v{vT5}, v{vS}, v{vS+1}, v{vS+2}")
    for t in range(3,15,2): A(f"v_max3_f32 v{vT5}, v{vT5}, v{vS+t}, v{vS+t+1}")
    A(f"v_max_f32 v{vT5}, v{vT5}, v{vS+15}\ns_nop 1")
    A(f"v_max_f32_dpp v{vT5}, v{vT5}, v{vT5} row_ror:8 row_mask:0xf bank_mask:0xf")
    xlane("v_max_f32",vT5,vT6)
    A(f"s_mov_b32 s{sT}, {fb(c)}\nv_mul_f32 v{vT8}, s{sT}, v{vT5}")
    for t in range(16): A(f"v_fma_f32 v{vS+t}, v{vS+t}, s{sT}, -v{vT8}")
    for t in range(16): A(f"v_exp_f32 v{vS+t}, v{vS+t}")
    A(f"s_nop 0\nv_add_f32 v{vT7}, v{vS}, v{vS+1}")
    for t in range(2,16): A(f"v_add_f32 v{vT7}, v{vT7}, v{vS+t}")
    A(f"s_nop 1\nv_add_f32_dpp v{vT7}, v{vT7}, v{vT7} row_ror:8 row_mask:0xf bank_mask:0xf")
    xlane("v_add_f32",vT7,vT6)
    A(f"""
    v_mov_b32 v{vT5}, {LDS_ML}
    s_lshl_b32 s{sT}, s{sW}, 4
    v_add_u32 v{vT5}, s{sT}, v{vT5}
    v_mov_b32 v{vA}, v{vT8}
    v_mov_b32 v{vA+1}, v{vT7}
    v_mov_b32 v{vA+2}, 1
    v_mov_b32 v{vA+3}, 0
    s_mov_b64 exec, 1
    ds_write_b128 v{vT5}, v[{vA}:{vA+3}]
    s_mov_b64 exec, -1
    """)
    for t in range(16):
        j=16+t; slot=slot_of[j]
        A(f"v_cvt_pk_bf16_f32 v{vT5}, v{vS+t}, v{vS+t}")
        for i in range(4): A(f"v_and_b32 v{vA+i}, v{vT5}, v{vM+i}")
        if f"kv{j}" in g.q: g.wait(f"kv{j}")
        else: A("s_nop 0")
        if MKE: gate_hooks(j,"mark")
        before_consume(j)
        A("s_nop 0")
        for i in range(3):
            r=vRING+(slot*3+i)*4
            A(f"v_mfma_f32_16x16x32_bf16 v[{vACC+4*i}:{vACC+4*i+3}], v[{vA}:{vA+3}], v[{r}:{r+3}], v[{vACC+4*i}:{vACC+4*i+3}]")
        after_consume(j)
        gate_hooks(j,"gate" if MKE else "both")
        if t==MLAT:
            A(f"""
            v_lshlrev_b32 v{vT9}, 4, v{vT2}
            s_mov_b32 s{sT2}, 0
            L_waitml:
            ds_read_b128 v[{vML}:{vML+3}], v{vT9} offset:{LDS_ML}
            s_waitcnt lgkmcnt(0)
            v_cmp_eq_u32 vcc, 1, v{vML+2}
            s_cmp_eq_u64 vcc, -1
            s_cbranch_scc1 L_waitml_ok
            s_add_u32 s{sT2}, s{sT2}, 1
            s_cmp_gt_u32 s{sT2}, {SPIN*4}
            s_cbranch_scc1 L_waitml_ok
            s_sleep 2
            s_branch L_waitml
            L_waitml_ok:
            v_mov_b32 v{vMS}, v{vML}
            """)
            red8("v_max_f32",vMS)
            A(f"v_sub_f32 v{vML+4}, v{vML}, v{vMS}\nv_exp_f32 v{vML+4}, v{vML+4}\ns_nop 0\nv_mul_f32 v{vMS+1}, v{vML+4}, v{vML+1}")
            A(f"v_readlane_b32 s{sSC}, v{vML+4}, s{sW}")
            red8("v_add_f32",vMS+1)
            for r in range(12): A(f"v_mul_f32 v{vACC+r}, s{sSC}, v{vACC+r}")
            for tt in range(MLAT+1,16): A(f"v_mul_f32 v{vS+tt}, s{sSC}, v{vS+tt}")
    wo_text=None
    if not isinstance(WOAT,int):
        mark=len(g.L); load_step(32); load_step(33); wo_text=g.L[mark:]; del g.L[mark:]
    wo_reg=[vRING+(slot_of[32+t//3]*3+t%3)*4 for t in range(6)]
    used=set()
    for r in wo_reg: used|=set(range(r,r+4))
    e0=None
    for st in range(vRING,vRING+RS*12-55,2):
        if all((r not in used) for r in range(st,st+56)): e0=st; break
    assert e0 is not None
    stamp("vend")
    A("s_nop 4")
    write_part()
    if WOAT=="preb3": g.L.extend(wo_text)
    A("s_waitcnt lgkmcnt(0)\ns_barrier")
    if WOAT=="b3": g.L.extend(wo_text)
    for u in range(4): A(f"ds_read_b64 v[{e0+2*u}:{e0+2*u+1}], v{vPR} offset:{LDS_PART+u*768}")
    A(f"""
    s_bitcmp1_b32 s{sLOC}, 1
    s_waitcnt lgkmcnt(0)
    v_add_f32 v{e0}, v{e0}, v{e0+2}
    v_add_f32 v{e0+1}, v{e0+1}, v{e0+3}
    v_add_f32 v{e0+4}, v{e0+4}, v{e0+6}
    v_add_f32 v{e0+5}, v{e0+5}, v{e0+7}
    v_add_f32 v{vG1}, v{e0}, v{e0+4}
    v_add_f32 v{vG1+1}, v{e0+1}, v{e0+5}
    """)
    for sw in ("v_permlane16_swap_b32","v_permlane32_swap_b32"):
        A(f"v_mov_b32 v{vT5}, v{vG1}\nv_mov_b32 v{vT6}, v{vG1+1}\ns_nop 0\n{sw} v{vT5}, v{vG1}\n{sw} v{vT6}, v{vG1+1}\ns_nop 0\nv_add_f32 v{vG1}, v{vG1}, v{vT5}\nv_add_f32 v{vG1+1}, v{vG1+1}, v{vT6}")
    A(f"""
    v_cndmask_b32 v{vG1}, v{vG1}, v{vMS}, s[{sL12}:{sL12+1}]
    v_cndmask_b32 v{vG1+1}, v{vG1+1}, v{vMS+1}, s[{sL12}:{sL12+1}]
    s_mov_b64 exec, 0x1fff
    s_cbranch_scc1 L_pub1_local
    buffer_store_dwordx4 v[{vG1}:{vG1+3}], v{vPB}, s[{srdWS}:{srdWS+3}], s{sPUB1} offen sc1
    s_branch L_pub1_done
    L_pub1_local:
    buffer_store_dwordx4 v[{vG1}:{vG1+3}], v{vPB}, s[{srdWS}:{srdWS+3}], s{sPUB1} offen
    L_pub1_done:
    s_mov_b64 exec, -1
    """)
    if WOAT=="pub": g.L.extend(wo_text)
    stamp("pub1")
    p0=e0; p1=e0+4
    for r in range(8): A(f"v_mov_b32 v{vACC+r}, 0")
    A(f"""
    s_mov_b32 s{sT2}, 0
    L_poll1:
    buffer_load_dwordx4 v[{p0}:{p0+3}], v{vP1A}, s[{srdWS}:{srdWS+3}], s{sPOLL1} offen sc1
    buffer_load_dwordx4 v[{p1}:{p1+3}], v{vP1B}, s[{srdWS}:{srdWS+3}], s{sPOLL1} offen sc1
    s_waitcnt vmcnt(0)
    v_cmp_eq_u64 vcc, s[{sTAG}:{sTAG+1}], v[{p0+2}:{p0+3}]
    v_cmp_eq_u64 s[62:63], s[{sTAG}:{sTAG+1}], v[{p1+2}:{p1+3}]
    s_and_b64 vcc, vcc, s[62:63]
    s_andn2_b64 exec, exec, vcc
    s_cbranch_execz L_poll1_ok
    s_add_u32 s{sT2}, s{sT2}, 1
    s_cmp_gt_u32 s{sT2}, {SPIN}
    s_cbranch_scc0 L_poll1
    L_poll1_ok:
    s_mov_b64 exec, -1
    """)
    g.q=[]
    stamp("p1ok")
    A(f"""
    v_mov_b32_dpp v{vT6}, v{p1} quad_perm:[1,1,3,3] row_mask:0xf bank_mask:0xf
    s_nop 1
    v_max_f32_dpp v{vT9}, v{vT6}, v{vT6} quad_perm:[2,3,0,1] row_mask:0xf bank_mask:0xf
    s_nop 1
    v_max_f32_dpp v{vT9}, v{vT9}, v{vT9} row_ror:4 row_mask:0xf bank_mask:0xf
    s_nop 1
    v_max_f32_dpp v{vT9}, v{vT9}, v{vT9} row_ror:8 row_mask:0xf bank_mask:0xf
    v_sub_f32 v{vT6}, v{vT6}, v{vT9}
    v_exp_f32 v{vT6}, v{vT6}
    s_nop 0
    """)
    for r in (p1+1,p0,p0+1,p1): A(f"v_mul_f32 v{r}, v{vT6}, v{r}")
    for dpp in ("quad_perm:[2,3,0,1]","row_ror:4","row_ror:8"):
        for r in (p1+1,p0,p0+1,p1): A(f"v_add_f32_dpp v{r}, v{r}, v{r} {dpp} row_mask:0xf bank_mask:0xf")
    vv=e0+8
    A(f"v_mov_b32_dpp v{vT4}, v{p1+1} quad_perm:[1,1,3,3] row_mask:0xf bank_mask:0xf")
    A(f"v_mov_b32_dpp v{vv}, v{p0} quad_perm:[0,0,2,2] row_mask:0xf bank_mask:0xf")
    A(f"v_mov_b32_dpp v{vv+1}, v{p0+1} quad_perm:[0,0,2,2] row_mask:0xf bank_mask:0xf")
    A(f"v_rcp_f32 v{vT4}, v{vT4}")
    A(f"v_mov_b32_dpp v{vv+2}, v{p1} quad_perm:[0,0,2,2] row_mask:0xf bank_mask:0xf")
    A(f"v_mov_b32_dpp v{vv+3}, v{p1+1} quad_perm:[0,0,2,2] row_mask:0xf bank_mask:0xf")
    A(f"v_mov_b32_dpp v{vv+4}, v{p0} quad_perm:[1,1,3,3] row_mask:0xf bank_mask:0xf")
    A(f"v_mov_b32_dpp v{vv+5}, v{p0+1} quad_perm:[1,1,3,3] row_mask:0xf bank_mask:0xf")
    for t in range(6): A(f"v_mul_f32 v{vv+t}, v{vT4}, v{vv+t}")
    for t in range(6): A(f"v_cvt_pk_bf16_f32 v{vv+t}, v{vv+t}, v{vv+t}")
    cand=[r for r in range(36,64,4)]
    for t in range(6):
        ar=cand[t]
        for i in range(4): A(f"v_and_b32 v{ar+i}, v{vv+t}, v{vMW+i}")
        if t>=1:
            tt=t-1; acc=vACC+4*(tt&1)
            A(f"v_mfma_f32_16x16x32_bf16 v[{acc}:{acc+3}], v[{cand[tt]}:{cand[tt]+3}], v[{wo_reg[tt]}:{wo_reg[tt]+3}], v[{acc}:{acc+3}]")
    A("s_nop 1")
    A(f"v_mfma_f32_16x16x32_bf16 v[{vACC+4}:{vACC+7}], v[{cand[5]}:{cand[5]+3}], v[{wo_reg[5]}:{wo_reg[5]+3}], v[{vACC+4}:{vACC+7}]")
    stamp("mfma")
    A("s_nop 7")
    for r in range(4): A(f"v_add_f32 v{vACC+r}, v{vACC+r}, v{vACC+4+r}")
    A(f"""
    s_mov_b64 exec, 0x03ff03ff
    ds_write_b128 v{vP2W}, v[{vACC}:{vACC+3}] offset:{LDS_P2}
    s_mov_b64 exec, -1
    s_waitcnt lgkmcnt(0)
    s_barrier
    """)
    stamp("b4")
    if NP2>1:
        A(f"s_cmp_eq_u32 s{sW}, 0\ns_cbranch_scc1 L_w0tail\ns_cmp_ge_u32 s{sW}, {NP2}\ns_cbranch_scc1 L_fin\ns_cmp_ge_u32 s{sH}, 10\ns_cbranch_scc1 L_fin")
        for w in range(1,NP2):
            A(f"s_cmp_lt_u32 s{sW}, {w}\ns_cbranch_scc1 L_p2go\ns_sleep {P2OFF}")
        A("L_p2go:\ns_branch L_p2start\nL_w0tail:")
    else:
        A(f"s_cmp_lg_u32 s{sW}, 0\ns_cbranch_scc1 L_fin")
    f0=e0+16; Y=e0+24
    if PD2=="nat":
        A(f"s_cmp_ge_u32 s{sH}, 10\ns_cbranch_scc1 L_nopre2")
        A(f"buffer_load_dwordx4 v[{Y}:{Y+3}], v{vL16}, s[{srdWS}:{srdWS+3}], s{sPOLL2} offen sc1")
        A(f"buffer_load_dwordx4 v[{Y+4}:{Y+7}], v{vL16}, s[{srdWS}:{srdWS+3}], s{sPOLL2} offen offset:1024 sc1")
        A("L_nopre2:")
    for w in range(8): A(f"ds_read_b64 v[{e0+2*w}:{e0+2*w+1}], v{vL8} offset:{LDS_P2+w*320}")
    A(f"s_cmp_ge_u32 s{sH}, 10\ns_waitcnt lgkmcnt(0)")
    for st in (4,2):
        for k in range(st): A(f"v_add_f32 v{e0+2*k}, v{e0+2*k}, v{e0+2*(k+st)}\nv_add_f32 v{e0+2*k+1}, v{e0+2*k+1}, v{e0+2*(k+st)+1}")
    A(f"v_add_f32 v{vG2}, v{e0}, v{e0+2}\nv_add_f32 v{vG2+1}, v{e0+1}, v{e0+3}")
    A(f"buffer_store_dwordx4 v[{vG2}:{vG2+3}], v{vP2A}, s[{srdWS}:{srdWS+3}], s{sPUB2} offen sc1")
    stamp("pub2")
    A(f"""
    s_cbranch_scc1 L_fin
    L_p2start:
    s_mov_b32 s{sT2}, 0
    """)
    def p2l(x):
        A(f"buffer_load_dwordx4 v[{x}:{x+3}], v{vL16}, s[{srdWS}:{srdWS+3}], s{sPOLL2} offen sc1")
        A(f"buffer_load_dwordx4 v[{x+4}:{x+7}], v{vL16}, s[{srdWS}:{srdWS+3}], s{sPOLL2} offen offset:1024 sc1")
    if PD2=="nat":
        YA,YB=Y,Y+8
        def chk(x,lab):
            A(f"""
            v_cmp_eq_u64 vcc, s[{sTAG}:{sTAG+1}], v[{x+2}:{x+3}]
            v_cmp_eq_u64 s[62:63], s[{sTAG}:{sTAG+1}], v[{x+6}:{x+7}]
            s_and_b64 vcc, vcc, s[62:63]
            s_cmp_eq_u64 vcc, -1
            s_cbranch_scc1 {lab}
            """)
        p2l(YB)
        A("s_waitcnt vmcnt(3)")
        chk(YA,"L_p2okA"); p2l(YA)
        A("L_poll2:\ns_waitcnt vmcnt(2)")
        chk(YB,"L_p2okB"); p2l(YB)
        A("s_waitcnt vmcnt(2)")
        chk(YA,"L_p2okA"); p2l(YA)
        A(f"s_add_u32 s{sT2}, s{sT2}, 1\ns_cmp_gt_u32 s{sT2}, {SPIN}\ns_cbranch_scc0 L_poll2")
        A(f"L_p2okB:\nv_add_f32 v{f0}, v{YB}, v{YB+4}\nv_add_f32 v{f0+1}, v{YB+1}, v{YB+5}\ns_branch L_p2done")
        A(f"L_p2okA:\nv_add_f32 v{f0}, v{YA}, v{YA+4}\nv_add_f32 v{f0+1}, v{YA+1}, v{YA+5}\nL_p2done:")
    elif PD2==1:
        A("L_poll2:")
        p2l(Y)
        A(f"""
        s_waitcnt vmcnt(0)
        v_cmp_eq_u64 vcc, s[{sTAG}:{sTAG+1}], v[{Y+2}:{Y+3}]
        v_cmp_eq_u64 s[62:63], s[{sTAG}:{sTAG+1}], v[{Y+6}:{Y+7}]
        s_and_b64 vcc, vcc, s[62:63]
        s_andn2_b64 exec, exec, vcc
        s_cbranch_execz L_poll2_ok
        s_add_u32 s{sT2}, s{sT2}, 1
        s_cmp_gt_u32 s{sT2}, {SPIN}
        s_cbranch_scc0 L_poll2
        L_poll2_ok:
        s_mov_b64 exec, -1
        v_add_f32 v{f0}, v{Y}, v{Y+4}
        v_add_f32 v{f0+1}, v{Y+1}, v{Y+5}
        """)
    else:
        YS=[Y+8*d for d in range(PD2)]
        for d in range(PD2):
            p2l(YS[d])
            if d<PD2-1: A(f"s_sleep {PSL2}")
        A("L_poll2:")
        for d in range(PD2):
            A(f"""
            s_waitcnt vmcnt({2*(PD2-1)})
            v_cmp_eq_u64 vcc, s[{sTAG}:{sTAG+1}], v[{YS[d]+2}:{YS[d]+3}]
            v_cmp_eq_u64 s[62:63], s[{sTAG}:{sTAG+1}], v[{YS[d]+6}:{YS[d]+7}]
            s_and_b64 vcc, vcc, s[62:63]
            s_cmp_eq_u64 vcc, -1
            s_cbranch_scc1 L_p2ok{d}
            """)
            p2l(YS[d])
        A(f"s_add_u32 s{sT2}, s{sT2}, 1\ns_cmp_gt_u32 s{sT2}, {SPIN}\ns_cbranch_scc0 L_poll2")
        for d in range(PD2-1,-1,-1):
            A(f"L_p2ok{d}:\nv_add_f32 v{f0}, v{YS[d]}, v{YS[d]+4}\nv_add_f32 v{f0+1}, v{YS[d]+1}, v{YS[d]+5}")
            if d>0: A("s_branch L_p2done")
        A("L_p2done:")
    for dpp in ("row_ror:4","row_ror:8"):
        A(f"s_nop 0\nv_add_f32_dpp v{f0}, v{f0}, v{f0} {dpp} row_mask:0xf bank_mask:0xf\nv_add_f32_dpp v{f0+1}, v{f0+1}, v{f0+1} {dpp} row_mask:0xf bank_mask:0xf")
    for sw in ("v_permlane16_swap_b32","v_permlane32_swap_b32"):
        A(f"v_mov_b32 v{vT5}, v{f0}\nv_mov_b32 v{vT6}, v{f0+1}\ns_nop 0\n{sw} v{vT5}, v{f0}\n{sw} v{vT6}, v{f0+1}\ns_nop 0\nv_add_f32 v{f0}, v{f0}, v{vT5}\nv_add_f32 v{f0+1}, v{f0+1}, v{vT6}")
    A(f"""
    v_cvt_pk_bf16_f32 v{vT5}, v{f0}, v{f0+1}
    s_mov_b64 exec, 0xf
    buffer_store_dword v{vT5}, v{vL4}, s[{srdOUT}:{srdOUT+3}], s{sOUTO} offen {OST}
    """)
    stamp("fin")
    A(f"""
    s_or_b32 s{sT}, s{sH}, s{sS}
    s_or_b32 s{sT}, s{sT}, s{sW}
    s_cmp_lg_u32 s{sT}, 0
    s_cbranch_scc1 L_fin
    v_mov_b32 v{vT5}, s{sTAG}
    v_mov_b32 v{vT4}, 0
    s_mov_b32 s{sT}, {WS_G}
    s_mov_b64 exec, 1
    buffer_store_dword v{vT5}, v{vT4}, s[{srdWS}:{srdWS+3}], s{sT} offen sc1
    L_fin:
    """)
    if STAMP:
        A("s_mov_b64 exec, -1\ns_waitcnt lgkmcnt(0)")
        A(f"s_mul_i32 s{sT}, s2, 9\ns_add_u32 s{sT}, s{sT}, s{sW}\ns_lshl_b32 s{sT}, s{sT}, 6")
        A(f"s_add_u32 s{sT}, s{sT}, {WS_ST}\ns_add_u32 s{sWS}, s{sWS}, s{sT}\ns_addc_u32 s{sWS+1}, s{sWS+1}, 0")
        for k in range(16): A(f"v_mov_b32 v{vRING+k}, s{sSTAMP+k}")
        A(f"v_mov_b32 v{vT4}, 0\ns_mov_b64 exec, 1")
        for k in range(4): A(f"global_store_dwordx4 v{vT4}, v[{vRING+4*k}:{vRING+4*k+3}], s[{sWS}:{sWS+1}] offset:{16*k}")
    A("L_end:\ns_endpgm")
    kd=f"""
.section .rodata,"a"
.p2align 6
.amdhsa_kernel {name}
  .amdhsa_next_free_vgpr 256
  .amdhsa_next_free_sgpr 96
  .amdhsa_accum_offset 256
  .amdhsa_group_segment_fixed_size 0
  .amdhsa_kernarg_size 64
  .amdhsa_user_sgpr_count 2
  .amdhsa_user_sgpr_kernarg_segment_ptr 1
  .amdhsa_system_sgpr_workgroup_id_x 1
.end_amdhsa_kernel
"""
    hdr=open("standalone__gqa_block_cached__decode.s.ref").read().split("; Override")[0]
    hdr+=HEADER
    hdr+="; @launch grid=(256,1,1) block=(512,1,1) lds=16384\n"
    hdr+=f'.amdgcn_target "amdgcn-amd-amdhsa--gfx950"\n.text\n.globl {name}\n.p2align 8\n.type {name},@function\n'
    return hdr+g.text()+kd

HEADER="""; Scheme: 256 workgroups = 32 heads x 8 key splits, 8 waves each, one workgroup per CU.
;  * hand-offs between workgroups are 16-byte granules {2 floats, 64-bit tag}.  The tag comes from a generation word
;    for markers of its neighbours (one per XCD / the other splits of its head): leaders yield bandwidth to laggards.
"""
META="""
.amdgpu_metadata
---
amdhsa.version: [1, 2]
amdhsa.kernels:
  - .name: {n}
    .symbol: {n}.kd
    .kernarg_segment_size: 64
    .kernarg_segment_align: 8
    .group_segment_fixed_size: 0
    .private_segment_fixed_size: 0
    .wavefront_size: 64
    .sgpr_count: 102
    .vgpr_count: 256
    .max_flat_workgroup_size: 1024
    .args:
      - {{.name: kernargs, .size: 64, .offset: 0, .value_kind: by_value}}
...
.end_amdgpu_metadata
"""
def build(fn, **kw):
    import subprocess
    s=gen(**kw)
    open(fn+".s","w").write(s)
    open(fn+"_m.s","w").write(s+META.format(n=KNAME))
    r=subprocess.run(["clang","-x","assembler","-target","amdgcn-amd-amdhsa","-mcpu=gfx950",fn+"_m.s","-o",fn+".co"],capture_output=True,text=True)
    if r.returncode: print(r.stderr[:3000]); sys.exit(1)
if __name__=="__main__":
    import ast
    kw={}
    for a in sys.argv[2:]:
        k,v=a.split("=",1)
        try: v=ast.literal_eval(v)
        except Exception: pass
        kw[k]=v
    build(sys.argv[1],**kw)
```
